```python
import torch

def _softmax(x, axis=-1):
    return torch.softmax(x, dim=axis)
def _gelu(x):
    return torch.nn.functional.gelu(x, approximate="tanh")
def _silu(x):
    return torch.nn.functional.silu(x)
def _sigmoid(x):
    return torch.sigmoid(x)
def _layernorm(x, axis=-1, eps=1e-5):
    m = x.mean(dim=axis, keepdim=True)
    v = x.var(dim=axis, keepdim=True, unbiased=False)
    return (x - m) / torch.sqrt(v + eps)
def _scatter_add(tgt, idx, src, axis=0):
    return tgt.clone().index_add_(axis, idx, src)
def _segment_sum(src, seg, n):
    out = torch.zeros((n,) + src.shape[1:], dtype=src.dtype)
    return out.index_add_(0, seg, src)
def _pad(x, pw):
    flat = tuple(v for pair in reversed(pw) for v in pair)
    return torch.nn.functional.pad(x, flat)

kernel_name = 'parallel_sum__compressed_kv_cla__dense_activation_gelu__decode'

def setup_inputs():

    _w = (lambda a: (lambda t: t.to(torch.bfloat16) if t.is_floating_point() else t)(torch.as_tensor(a)))
    def _A_setup():
        B, H, Sq, Sk, D, M = 2, 16, 1, 4096, 256, 448
        Dc = 4 * D
        return {
            "x": _w((lambda *s: torch.randn(*s, dtype=torch.bfloat16) * 0.05)(B, Sq, M)),
            "c_kv": _w((lambda *s: torch.randn(*s, dtype=torch.bfloat16) * 0.8)(B, Sk, Dc)),
            "w_q": _w((lambda *s: torch.randn(*s, dtype=torch.bfloat16) * 3.2)(M, H, D) * (M ** -0.5)),
            "w_uk": _w((lambda *s: torch.randn(*s, dtype=torch.bfloat16) * 3.2)(Dc, H, D) * (Dc ** -0.5)),
            "w_uv": _w((lambda *s: torch.randn(*s, dtype=torch.bfloat16) * 0.8)(Dc, H, D) * (Dc ** -0.5)),
            "w_o": _w((lambda *s: torch.randn(*s, dtype=torch.bfloat16) * 0.8)(H, D, M) * ((H * D) ** -0.5)),
        }
    _A_in = _A_setup()

    def _B_setup():
        B, S, D, F = 2, 1, 448, 1792
        return {
            "x": _w((lambda *s: torch.randn(*s, dtype=torch.bfloat16) * 0.05)(B, S, D)),
            "w1": _w((lambda *s: torch.randn(*s, dtype=torch.bfloat16) * 1.6)(D, F) * (D ** -0.5)),
            "b1": _w((lambda *s: torch.randn(*s, dtype=torch.bfloat16) * 1.6)(F) * 0.01),
            "w2": _w((lambda *s: torch.randn(*s, dtype=torch.bfloat16) * 0.2)(F, D) * (F ** -0.5)),
            "b2": _w((lambda *s: torch.randn(*s, dtype=torch.bfloat16) * 0.2)(D) * 0.01),
        }
    _B_in = _B_setup()

    return {
        "A_x": _A_in["x"],
        "A_c_kv": _A_in["c_kv"],
        "A_w_q": _A_in["w_q"],
        "A_w_uk": _A_in["w_uk"],
        "A_w_uv": _A_in["w_uv"],
        "A_w_o": _A_in["w_o"],
        "B_x": _B_in["x"],
        "B_w1": _B_in["w1"],
        "B_b1": _B_in["b1"],
        "B_w2": _B_in["w2"],
        "B_b2": _B_in["b2"],
    }

def reference(A_x, A_c_kv, A_w_q, A_w_uk, A_w_uv, A_w_o, B_x, B_w1, B_b1, B_w2, B_b2):
    def _A_ref(x, c_kv, w_q, w_uk, w_uv, w_o):
        B, Sq, M = x.shape[0], x.shape[1], x.shape[2]
        Sk = c_kv.shape[1]
        H, D = w_q.shape[1], w_q.shape[2]
        q = torch.einsum("bqm,mhd->bhqd", x, w_q)
        k = torch.einsum("bkc,chd->bhkd", c_kv, w_uk)
        v = torch.einsum("bkc,chd->bhkd", c_kv, w_uv)
        scores = torch.einsum("bhqd,bhkd->bhqk", q, k) * (D ** -0.5)
        off = Sk - Sq
        qi = torch.arange(Sq)[:, None]
        kj = torch.arange(Sk)[None, :]
        cmask = kj <= (qi + off)
        scores = torch.where(cmask[None, None], scores, -1e9)
        p = _softmax(scores, axis=-1)
        ctx = torch.einsum("bhqk,bhkd->bhqd", p, v)
        return torch.einsum("bhqd,hdm->bqm", ctx, w_o)

    def _B_ref(x, w1, b1, w2, b2):
        h = torch.einsum("bsd,df->bsf", x, w1) + b1
        h = _gelu(h)
        return torch.einsum("bsf,fd->bsd", h, w2) + b2

    x = A_x
    xn = _layernorm(x, axis=-1)
    return x + _A_ref(xn, A_c_kv, A_w_q, A_w_uk, A_w_uv, A_w_o) + _B_ref(xn, B_w1, B_b1, B_w2, B_b2)
```

```python
import sys
O=[]
def e(s): O.append(s)
NAME="parallel_sum__compressed_kv_cla__dense_activation_gelu__decode"
hdr=open(f"cdna_kernels/{NAME}.s.ref").read().split("; Override")[0]
e(hdr.rstrip())
e("; @launch kernel=ka_kernel grid=(270,1,1) block=(512,1,1) lds=49152")
e("; @launch kernel=kb_kernel grid=(284,1,1) block=(256,1,1) lds=74240")
e("; @launch kernel=kc_kernel grid=(256,1,1) block=(512,1,1) lds=40960")
e("; @launch kernel=kd_kernel grid=(28,1,1) block=(256,1,1) lds=1024")
e('.amdgcn_target "amdgcn-amd-amdhsa--gfx950"\n.text')
WS_QABS=0; WS_HID=0x10000; WS_M=0x20000; WS_L=0x24000; WS_PLAT=0x100000; WS_POUT=0x1000000
def start(n,limit):
    e(f".globl {n}\n.p2align 8\n.type {n},@function\n{n}:")
    e(f"s_cmp_ge_u32 s2, {limit}\ns_cbranch_scc1 {n}_end")
    e("s_load_dwordx16 s[16:31], s[0:1], 0")
    e("s_load_dwordx8 s[32:39], s[0:1], 64")
    e("s_load_dwordx2 s[40:41], s[0:1], 104")
    e("s_waitcnt lgkmcnt(0)")
def end(n,vg):
    e(f"{n}_end:\ns_endpgm")
    e(f""".section .rodata,"a"
.p2align 6
.amdhsa_kernel {n}
  .amdhsa_next_free_vgpr {vg}
  .amdhsa_next_free_sgpr 96
  .amdhsa_accum_offset {vg}
  .amdhsa_group_segment_fixed_size 0
  .amdhsa_kernarg_size 112
  .amdhsa_user_sgpr_count 2
  .amdhsa_user_sgpr_kernarg_segment_ptr 1
  .amdhsa_system_sgpr_workgroup_id_x 1
.end_amdhsa_kernel
.text""")
def bf(v,t): e(f"v_cvt_pk_bf16_f32 v{t}, v{v}, v{v}\nv_lshlrev_b32 v{v}, 16, v{t}")
def wred(op,v,lane,t,masks=(1,2,4,8,16,32)):
    for m in masks:
        e(f"v_xor_b32 v{t}, {m}, v{lane}\nv_lshlrev_b32 v{t}, 2, v{t}\nds_bpermute_b32 v{t}, v{t}, v{v}\ns_waitcnt lgkmcnt(0)\n{op} v{v}, v{v}, v{t}")
def fma_rows(buf,n,acc,xaddr,xstep,xt):
    for i in range(n):
        e(f"ds_read_b64 v[{xt}:{xt+1}], v{xaddr} offset:{i*xstep}")
        e(f"s_waitcnt vmcnt({n-1-i}) lgkmcnt(0)")
        for k in range(4):
            r=buf+4*i+k
            e(f"v_lshlrev_b32 v{xt+2}, 16, v{r}\nv_and_b32 v{xt+3}, 0xffff0000, v{r}")
            e(f"v_fmac_f32 v{acc+2*k}, v{xt+2}, v{xt}\nv_fmac_f32 v{acc+8+2*k}, v{xt+2}, v{xt+1}")
            e(f"v_fmac_f32 v{acc+2*k+1}, v{xt+3}, v{xt}\nv_fmac_f32 v{acc+8+2*k+1}, v{xt+3}, v{xt+1}")
def loads(buf,n,voff,step,base):
    for i in range(n):
        e(f"global_load_dwordx4 v[{buf+4*i}:{buf+4*i+3}], v{voff}, s[{base}:{base+1}]")
        if i<n-1: e(f"v_add_u32 v{voff}, {step}, v{voff}")
def zacc(a,n=16):
    for i in range(n): e(f"v_mov_b32 v{a+i}, 0")
def wacc(addr,acc,bstride):
    e(f"ds_write_b128 v{addr}, v[{acc}:{acc+3}]\nds_write_b128 v{addr}, v[{acc+4}:{acc+7}] offset:16")
    e(f"ds_write_b128 v{addr}, v[{acc+8}:{acc+11}] offset:{bstride}\nds_write_b128 v{addr}, v[{acc+12}:{acc+15}] offset:{bstride+16}")
BAR="s_waitcnt vmcnt(0) lgkmcnt(0)\ns_barrier"
BARL="s_waitcnt lgkmcnt(0)\ns_barrier"

start("ka_kernel",270)
e("v_and_b32 v1, 63, v0\nv_lshrrev_b32 v2, 6, v0\ns_nop 0\nv_readfirstlane_b32 s3, v2")
e("s_cmp_ge_u32 s2, 256\ns_cbranch_scc1 ka_ffn_ld")
e("s_and_b32 s4, s2, 7\ns_lshl_b32 s4, s4, 1\ns_bfe_u32 s5, s2, 0x10003\ns_add_u32 s4, s4, s5\ns_lshr_b32 s5, s2, 4")
e("v_and_b32 v3, 31, v0\nv_lshrrev_b32 v4, 5, v0\nv_lshlrev_b32 v5, 13, v4\nv_lshl_add_u32 v5, v3, 4, v5\ns_lshl_b32 s6, s4, 9\nv_add_u32 v5, s6, v5")
loads(64,28,5,131072,20)
e("s_and_b32 s7, s3, 3\ns_lshl_b32 s7, s7, 4\ns_lshl_b32 s8, s5, 6\ns_add_u32 s7, s7, s8")
e("v_and_b32 v6, 15, v1\nv_add_u32 v6, s7, v6\nv_lshlrev_b32 v6, 13, v6\nv_lshrrev_b32 v7, 4, v1\nv_lshl_add_u32 v6, v7, 4, v6\nv_add_u32 v6, s6, v6")
for jj in range(8): e(f"global_load_dwordx4 v[{192+4*jj}:{195+4*jj}], v6, s[22:23] offset:{jj*64}")
e("s_branch ka_ln")
e("ka_ffn_ld:\ns_sub_u32 s4, s2, 256")
e("v_and_b32 v3, 15, v0\nv_lshrrev_b32 v4, 4, v0\nv_mul_u32_u24 v5, 3584, v4\nv_lshl_add_u32 v5, v3, 4, v5\ns_lshl_b32 s6, s4, 8\nv_add_u32 v5, s6, v5")
loads(64,14,5,114688,30)
e("ka_ln:")
e("v_mov_b32 v8, 0\nv_mov_b32 v9, 0\nv_mov_b32 v10, 0\nv_mov_b32 v11, 0\nv_lshlrev_b32 v12, 4, v0\nds_write_b128 v12, v[8:11] offset:40960")
e("s_cmp_lg_u32 s3, 0\ns_cbranch_scc1 ka_lnd")
e("v_lshlrev_b32 v12, 1, v1")
for b in range(2):
    for i in range(7): e(f"global_load_ushort v{20+b*7+i}, v12, s[16:17] offset:{b*896+i*128}")
e("s_waitcnt vmcnt(0)")
for b in range(2):
    r=20+b*7
    for i in range(7): e(f"v_lshlrev_b32 v{r+i}, 16, v{r+i}")
    e(f"v_add_f32 v13, v{r}, v{r+1}")
    for i in range(2,7): e(f"v_add_f32 v13, v13, v{r+i}")
    wred("v_add_f32",13,1,14)
    e("v_mul_f32 v13, 0x3b124925, v13")
    e("v_mov_b32 v15, 0")
    for i in range(7): e(f"v_sub_f32 v14, v{r+i}, v13\nv_fmac_f32 v15, v14, v14")
    wred("v_add_f32",15,1,14)
    e("v_mul_f32 v15, 0x3b124925, v15")
    bf(13,14); bf(15,14)
    e("v_add_f32 v15, 0x3727c5ac, v15"); bf(15,14)
    e("v_sqrt_f32 v15, v15\ns_nop 0"); bf(15,14)
    e("v_rcp_f32 v15, v15\ns_nop 0")
    for i in range(7):
        e(f"v_sub_f32 v{r+i}, v{r+i}, v13"); bf(r+i,14)
        e(f"v_mul_f32 v{r+i}, v{r+i}, v15"); bf(r+i,14)
    e(f"v_lshlrev_b32 v14, 3, v1")
    for i in range(7): e(f"ds_write_b32 v14, v{r+i} offset:{i*512+b*4}")
e("ka_lnd:")
e(BARL)
zacc(40)
e("s_cmp_ge_u32 s2, 256\ns_cbranch_scc1 ka_ffn")
e("v_lshlrev_b32 v12, 3, v4")
fma_rows(64,28,40,12,128,16)
e("v_lshlrev_b32 v12, 11, v4\nv_lshl_add_u32 v12, v3, 5, v12")
e("v_add_u32 v12, 4096, v12")
wacc(12,40,1024)
e(BARL)
e("v_lshlrev_b32 v12, 2, v0\nv_mov_b32 v13, 0")
for g in range(16): e(f"ds_read_b32 v{64+g}, v12 offset:{4096+g*2048}")
e("s_waitcnt lgkmcnt(0)")
for g in range(16): e(f"v_add_f32 v13, v13, v{64+g}")
e("v_cvt_pk_bf16_f32 v13, v13, v13\nv_lshlrev_b32 v12, 1, v0\nds_write_b16 v12, v13 offset:40960")
e(BARL)
e("s_cmp_ge_u32 s3, 4\ns_cbranch_scc1 ka_kernel_end")
e("v_and_b32 v12, 15, v1\nv_lshlrev_b32 v12, 9, v12\nv_lshl_add_u32 v12, v7, 4, v12")
for jj in range(8): e(f"ds_read_b128 v[{64+4*jj}:{67+4*jj}], v12 offset:{40960+jj*64}")
zacc(40,4)
e("s_waitcnt vmcnt(0) lgkmcnt(0)")
for jj in range(8): e(f"v_mfma_f32_16x16x32_bf16 v[40:43], v[{192+4*jj}:{195+4*jj}], v[{64+4*jj}:{67+4*jj}], v[40:43]")
e("s_nop 15")
e("v_cvt_pk_bf16_f32 v44, v40, v41\nv_cvt_pk_bf16_f32 v45, v42, v43")
e("v_and_b32 v12, 15, v1\nv_lshlrev_b32 v13, 15, v12\nv_lshl_add_u32 v13, v7, 3, v13\ns_lshl_b32 s9, s4, 11\ns_lshl_b32 s7, s7, 1\ns_add_u32 s9, s9, s7\nv_add_u32 v13, s9, v13")
e("v_cmp_gt_u32 vcc, 2, v12\ns_and_saveexec_b64 s[10:11], vcc\nglobal_store_dwordx2 v13, v[44:45], s[40:41]\ns_branch ka_kernel_end")
e("ka_ffn:")
e("v_lshlrev_b32 v12, 3, v4")
fma_rows(64,14,40,12,256,16)
e("v_lshlrev_b32 v12, 10, v4\nv_lshl_add_u32 v12, v3, 5, v12\nv_add_u32 v12, 4096, v12")
wacc(12,40,512)
e(BARL)
e("s_cmp_ge_u32 s3, 4\ns_cbranch_scc1 ka_kernel_end")
e("v_lshlrev_b32 v12, 2, v0\nv_mov_b32 v13, 0")
for g in range(32): e(f"ds_read_b32 v{64+g}, v12 offset:{4096+g*1024}")
e("v_and_b32 v14, 127, v0\ns_lshl_b32 s6, s4, 7\nv_add_u32 v14, s6, v14\nv_lshlrev_b32 v15, 1, v14\nglobal_load_ushort v16, v15, s[32:33]")
e("s_waitcnt lgkmcnt(0)")
for g in range(32): e(f"v_add_f32 v13, v13, v{64+g}")
bf(13,17)
e("s_waitcnt vmcnt(0)\nv_lshlrev_b32 v16, 16, v16\nv_add_f32 v13, v13, v16"); bf(13,17)
e("v_mul_f32 v16, v13, v13\nv_mul_f32 v16, 0x3d372713, v16\nv_add_f32 v16, 1.0, v16\nv_mul_f32 v16, v16, v13")
e("v_mul_f32 v16, 0xc0135761, v16")
e("v_exp_f32 v16, v16\ns_nop 0\nv_add_f32 v16, 1.0, v16\nv_rcp_f32 v16, v16\ns_nop 0\nv_mul_f32 v13, v13, v16"); bf(13,17)
e(f"v_lshrrev_b32 v15, 7, v0\nv_mul_u32_u24 v15, 1792, v15\nv_add_u32 v15, v15, v14\nv_lshlrev_b32 v15, 2, v15\nv_add_u32 v15, {WS_HID}, v15\nglobal_store_dword v15, v13, s[40:41]")
end("ka_kernel",224)

start("kb_kernel",284)
e("v_and_b32 v1, 63, v0\nv_lshrrev_b32 v2, 6, v0\ns_nop 0\nv_readfirstlane_b32 s3, v2")
e("s_cmp_ge_u32 s2, 256\ns_cbranch_scc1 kb_ffn")
e("s_lshr_b32 s4, s2, 7\ns_and_b32 s5, s2, 127")
e("v_and_b32 v3, 15, v1\nv_lshrrev_b32 v4, 4, v1")
e("s_lshl_b32 s6, s4, 23\ns_lshl_b32 s7, s5, 16\ns_add_u32 s6, s6, s7\ns_lshl_b32 s7, s3, 9\ns_add_u32 s6, s6, s7")
e("v_lshlrev_b32 v5, 11, v3\nv_lshl_add_u32 v5, v4, 4, v5\nv_add_u32 v5, s6, v5\nv_add_u32 v6, 0x8000, v5")
for j in range(8): e(f"global_load_dwordx4 v[{64+4*j}:{67+4*j}], v5, s[18:19] offset:{j*64}")
for j in range(8): e(f"global_load_dwordx4 v[{96+4*j}:{99+4*j}], v6, s[18:19] offset:{j*64}")
e("s_lshl_b32 s8, s4, 15\ns_add_u32 s8, s8, s7\nv_lshlrev_b32 v7, 11, v3\nv_lshl_add_u32 v7, v4, 4, v7\nv_add_u32 v7, s8, v7")
for j in range(8): e(f"global_load_dwordx4 v[{128+4*j}:{131+4*j}], v7, s[40:41] offset:{j*64}")
zacc(40,8)
e("v_mul_u32_u24 v8, 2064, v3\nv_lshl_add_u32 v8, v4, 4, v8\nv_add_u32 v8, s7, v8")
e("s_waitcnt vmcnt(8)")
for j in range(8): e(f"ds_write_b128 v8, v[{64+4*j}:{67+4*j}] offset:{j*64}\nds_write_b128 v8, v[{96+4*j}:{99+4*j}] offset:{j*64+16*2064}")
e("s_waitcnt vmcnt(0)")
for j in range(8):
    e(f"v_mfma_f32_16x16x32_bf16 v[40:43], v[{64+4*j}:{67+4*j}], v[{128+4*j}:{131+4*j}], v[40:43]")
    e(f"v_mfma_f32_16x16x32_bf16 v[44:47], v[{96+4*j}:{99+4*j}], v[{128+4*j}:{131+4*j}], v[44:47]")
e("s_nop 15")
e("v_lshlrev_b32 v9, 5, v1\nv_add_u32 v9, 66048, v9\ns_lshl_b32 s9, s3, 11\nv_add_u32 v15, s9, v9\nds_write_b128 v15, v[40:43]\nds_write_b128 v15, v[44:47] offset:16")
e(BARL)
for w in range(4): e(f"ds_read_b128 v[{160+8*w}:{163+8*w}], v9 offset:{w*2048}\nds_read_b128 v[{164+8*w}:{167+8*w}], v9 offset:{w*2048+16}")
e("s_waitcnt lgkmcnt(0)")
for i in range(8):
    e(f"v_add_f32 v{40+i}, v{160+i}, v{168+i}\nv_add_f32 v{40+i}, v{40+i}, v{176+i}\nv_add_f32 v{40+i}, v{40+i}, v{184+i}")
e("v_max_f32 v10, v40, v41")
for i in range(2,8): e(f"v_max_f32 v10, v10, v{40+i}")
wred("v_max_f32",10,1,11,(16,32))
e("v_mov_b32 v12, 0")
for i in range(8):
    e(f"v_sub_f32 v{40+i}, v{40+i}, v10\nv_mul_f32 v{40+i}, 0x3db8aa3b, v{40+i}\nv_exp_f32 v{40+i}, v{40+i}\ns_nop 0\nv_add_f32 v12, v12, v{40+i}")
wred("v_add_f32",12,1,11,(16,32))
for i in range(4): e(f"v_cvt_pk_bf16_f32 v{48+i}, v{40+2*i}, v{41+2*i}")
e("s_lshl_b32 s10, s2, 6\nv_lshl_add_u32 v13, v1, 2, s10\nv_add_u32 v14, %d, v13\nv_add_u32 v13, %d, v13"%(WS_M,WS_L))
e("s_cmp_lg_u32 s3, 0\ns_cbranch_scc1 kb_nost\nv_cmp_gt_u32 vcc, 16, v1\ns_and_saveexec_b64 s[12:13], vcc\nglobal_store_dword v14, v10, s[40:41]\nglobal_store_dword v13, v12, s[40:41]\ns_mov_b64 exec, s[12:13]\nkb_nost:")
e("v_lshrrev_b32 v13, 2, v3\nv_lshl_add_u32 v13, v4, 2, v13\nv_mul_u32_u24 v13, 2064, v13\nv_and_b32 v14, 3, v3\nv_lshl_add_u32 v13, v14, 3, v13\nv_add_u32 v13, s7, v13")
for n in range(16):
    e(f"ds_read_b64_tr_b16 v[{64+4*n}:{65+4*n}], v13 offset:{n*32}\nds_read_b64_tr_b16 v[{66+4*n}:{67+4*n}], v13 offset:{n*32+16*2064}")
e("s_waitcnt lgkmcnt(0)")
for n in range(16):
    e(f"v_mfma_f32_16x16x32_bf16 v[{128+4*n}:{131+4*n}], v[{64+4*n}:{67+4*n}], v[48:51], 0")
e("s_nop 15")
e(f"s_lshl_b32 s10, s2, 15\ns_add_u32 s10, s10, s7\ns_add_u32 s10, s10, {WS_PLAT}\nv_lshlrev_b32 v13, 11, v3\nv_lshl_add_u32 v13, v4, 3, v13\nv_add_u32 v13, s10, v13")
for n in range(16):
    r=128+4*n
    e(f"v_cvt_pk_bf16_f32 v{r}, v{r}, v{r+1}\nv_cvt_pk_bf16_f32 v{r+1}, v{r+2}, v{r+3}\nglobal_store_dwordx2 v13, v[{r}:{r+1}], s[40:41] offset:{n*32}")
e("s_branch kb_kernel_end")
e("kb_ffn:\ns_sub_u32 s4, s2, 256")
e("v_cmp_gt_u32 vcc, 224, v0\ns_and_saveexec_b64 s[12:13], vcc")
e("v_mul_u32_u24 v4, 1171, v0\nv_lshrrev_b32 v4, 16, v4\nv_mul_u32_u24 v3, 56, v4\nv_sub_u32 v3, v0, v3")
e("s_mul_i32 s6, s4, 64*896\nv_mul_u32_u24 v5, 896, v4\nv_lshl_add_u32 v5, v3, 4, v5\nv_add_u32 v5, s6, v5")
loads(64,16,5,4*896,34)
e(f"s_mov_b64 exec, s[12:13]\nv_cmp_gt_u32 vcc, 128, v0\ns_and_saveexec_b64 s[14:15], vcc\nv_and_b32 v6, 63, v0\ns_lshl_b32 s6, s4, 6\nv_add_u32 v6, s6, v6\nv_lshrrev_b32 v7, 6, v0\nv_mul_u32_u24 v8, 1792, v7\nv_add_u32 v8, v8, v6\nv_lshlrev_b32 v8, 2, v8\nv_add_u32 v8, {WS_HID}, v8\nglobal_load_dword v9, v8, s[40:41]")
e("v_and_b32 v6, 63, v0\nv_lshlrev_b32 v6, 3, v6\nv_lshl_add_u32 v6, v7, 2, v6\ns_waitcnt vmcnt(0)\nds_write_b32 v6, v9\ns_mov_b64 exec, s[14:15]")
e(BARL)
e("v_cmp_gt_u32 vcc, 224, v0\ns_and_saveexec_b64 s[12:13], vcc")
zacc(40)
e("v_lshlrev_b32 v12, 3, v4")
fma_rows(64,16,40,12,32,16)
e("v_mul_u32_u24 v12, 3584, v4\nv_lshl_add_u32 v12, v3, 5, v12\nv_add_u32 v12, 1024, v12")
wacc(12,40,1792)
e("s_mov_b64 exec, s[12:13]")
e(BARL)
e(f"s_mul_i32 s6, s2, 3584\ns_add_u32 s6, s6, {WS_POUT}")
for k in range(4):
    lim = 256 if k<3 else 128
    e(f"v_add_u32 v12, {k*256}, v0\nv_lshlrev_b32 v12, 2, v12")
    for g in range(4): e(f"ds_read_b32 v{20+g}, v12 offset:{1024+g*3584}")
    e("s_waitcnt lgkmcnt(0)\nv_add_f32 v20, v20, v21\nv_add_f32 v20, v20, v22\nv_add_f32 v20, v20, v23\nv_add_u32 v12, s6, v12")
    e(f"v_cmp_gt_u32 vcc, {lim}, v0\ns_and_saveexec_b64 s[12:13], vcc\nglobal_store_dword v12, v20, s[40:41]\ns_mov_b64 exec, s[12:13]")
end("kb_kernel",192)

start("kc_kernel",256)
e("v_and_b32 v1, 63, v0\nv_lshrrev_b32 v2, 6, v0\ns_nop 0\nv_readfirstlane_b32 s3, v2")
e("s_and_b32 s4, s2, 7\ns_lshl_b32 s4, s4, 1\ns_bfe_u32 s5, s2, 0x10003\ns_add_u32 s4, s4, s5\ns_lshr_b32 s5, s2, 4")
e(f"v_and_b32 v3, 7, v0\nv_lshrrev_b32 v4, 3, v0\nv_lshlrev_b32 v5, 15, v4\nv_lshl_add_u32 v5, v3, 4, v5\ns_lshl_b32 s6, s4, 11\ns_lshl_b32 s7, s5, 7\ns_add_u32 s6, s6, s7\ns_add_u32 s6, s6, {WS_PLAT}\nv_add_u32 v5, s6, v5")
loads(64,4,5,64*32768,40)
e("v_and_b32 v6, 31, v0\nv_lshrrev_b32 v7, 5, v0\ns_lshl_b32 s8, s5, 6\nv_add_u32 v8, s8, v7\nv_lshlrev_b32 v8, 13, v8\nv_lshl_add_u32 v8, v6, 4, v8\ns_lshl_b32 s9, s4, 9\nv_add_u32 v8, s9, v8")
loads(80,4,8,16*8192,24)
e("v_mul_u32_u24 v10, 1171, v0\nv_lshrrev_b32 v10, 16, v10\nv_mul_u32_u24 v9, 56, v10\nv_sub_u32 v9, v0, v9\nv_min_u32 v10, 7, v10")
e("s_lshl_b32 s9, s4, 8\nv_add_u32 v11, s9, v10\nv_mul_u32_u24 v11, 896, v11\nv_lshl_add_u32 v11, v9, 4, v11")
loads(128,32,11,8*896,26)
e("s_cmp_ge_u32 s3, 2\ns_cbranch_scc1 kc_st")
e(f"s_lshl_b32 s10, s3, 13\ns_lshl_b32 s11, s4, 2\ns_add_u32 s10, s10, s11\nv_lshl_add_u32 v12, v1, 6, s10\nv_add_u32 v13, {WS_M}, v12\nv_add_u32 v12, {WS_L}, v12")
e("global_load_dword v14, v13, s[40:41]\nglobal_load_dword v15, v13, s[40:41] offset:4096-4096+0".replace("4096-4096+0","0"))
O.pop(); e("global_load_dword v14, v13, s[40:41]\nglobal_load_dword v16, v12, s[40:41]\nv_add_u32 v13, 4096, v13\nv_add_u32 v12, 4096, v12\nglobal_load_dword v15, v13, s[40:41]\nglobal_load_dword v17, v12, s[40:41]")
e("s_waitcnt vmcnt(0)\nv_max_f32 v18, v14, v15")
wred("v_max_f32",18,1,19)
e("v_sub_f32 v14, v14, v18\nv_sub_f32 v15, v15, v18\nv_mul_f32 v14, 0x3db8aa3b, v14\nv_mul_f32 v15, 0x3db8aa3b, v15\nv_exp_f32 v14, v14\nv_exp_f32 v15, v15\ns_nop 0\nv_mul_f32 v18, v14, v16\nv_fmac_f32 v18, v15, v17")
wred("v_add_f32",18,1,19)
e("v_rcp_f32 v18, v18\ns_nop 0\nv_mul_f32 v14, v14, v18\nv_mul_f32 v15, v15, v18\ns_lshl_b32 s10, s3, 9\nv_lshl_add_u32 v19, v1, 2, s10\nds_write_b32 v19, v14\nds_write_b32 v19, v15 offset:256")
e("kc_st:")
e(BARL)
zacc(40)
e("v_lshlrev_b32 v12, 2, v4")
for i in range(4):
    e(f"ds_read_b32 v16, v12 offset:{i*256}\ns_waitcnt vmcnt({39-i}) lgkmcnt(0)")
    a=40+8*(i>>1)
    for k in range(4):
        r=64+4*i+k
        e(f"v_lshlrev_b32 v18, 16, v{r}\nv_and_b32 v19, 0xffff0000, v{r}\nv_fmac_f32 v{a+2*k}, v18, v16\nv_fmac_f32 v{a+2*k+1}, v19, v16")
e("v_lshlrev_b32 v12, 9, v4\nv_lshl_add_u32 v12, v3, 5, v12\nv_add_u32 v12, 4096, v12")
wacc(12,40,256)
e(BARL)
e("s_cmp_ge_u32 s3, 2\ns_cbranch_scc1 kc_l2\nv_lshlrev_b32 v12, 2, v0\nv_mov_b32 v13, 0")
for q in range(4):
    for g in range(16): e(f"ds_read_b32 v{20+g}, v12 offset:{4096+(q*16+g)*512}")
    e("s_waitcnt lgkmcnt(0)")
    for g in range(16): e(f"v_add_f32 v13, v13, v{20+g}")
e("v_and_b32 v12, 63, v0\nv_lshlrev_b32 v12, 3, v12\nv_lshl_add_u32 v12, v2, 2, v12\nds_write_b32 v12, v13 offset:1024\nkc_l2:")
e(BARL)
zacc(40)
e("v_lshlrev_b32 v12, 3, v7\nv_add_u32 v12, 1024, v12")
O_len=len(O); fma_rows(80,4,40,12,128,16)
for i in range(O_len,len(O)):
    if O[i].startswith("s_waitcnt vmcnt("): O[i]="s_waitcnt vmcnt(32) lgkmcnt(0)"
e("v_lshlrev_b32 v12, 11, v7\nv_lshl_add_u32 v12, v6, 5, v12\nv_add_u32 v12, 4096, v12")
wacc(12,40,1024)
e(BARL)
e("v_lshlrev_b32 v12, 2, v0\nv_mov_b32 v13, 0")
for g in range(16): e(f"ds_read_b32 v{20+g}, v12 offset:{4096+g*2048}")
e("s_waitcnt lgkmcnt(0)")
for g in range(16): e(f"v_add_f32 v13, v13, v{20+g}")
e("s_barrier\nv_and_b32 v12, 255, v0\nv_lshlrev_b32 v12, 3, v12\nv_lshrrev_b32 v14, 8, v0\nv_lshl_add_u32 v12, v14, 2, v12\nds_write_b32 v12, v13 offset:2048")
e(BARL)
zacc(40)
e("v_lshlrev_b32 v12, 3, v10\nv_add_u32 v12, 2048, v12")
fma_rows(128,32,40,12,64,16)
e("v_mul_u32_u24 v12, 3584, v10\nv_lshl_add_u32 v12, v9, 5, v12\nv_add_u32 v12, 4096, v12")
e("v_cmp_gt_u32 vcc, 448, v0\ns_and_saveexec_b64 s[12:13], vcc")
wacc(12,40,1792)
e("s_mov_b64 exec, s[12:13]")
e(BARL)
e(f"s_mul_i32 s6, s2, 3584\ns_add_u32 s6, s6, {WS_POUT}")
for k in range(2):
    lim=512 if k==0 else 384
    e(f"v_add_u32 v12, {k*512}, v0\nv_lshlrev_b32 v12, 2, v12\nv_mov_b32 v13, 0")
    for g in range(8): e(f"ds_read_b32 v{20+g}, v12 offset:{4096+g*3584}")
    e("s_waitcnt lgkmcnt(0)")
    for g in range(8): e(f"v_add_f32 v13, v13, v{20+g}")
    e(f"v_add_u32 v12, s6, v12\nv_cmp_gt_u32 vcc, {lim}, v0\ns_and_saveexec_b64 s[12:13], vcc\nglobal_store_dword v12, v13, s[40:41]\ns_mov_b64 exec, s[12:13]")
end("kc_kernel",256)

start("kd_kernel",28)
e(f"v_and_b32 v3, 31, v0\nv_lshrrev_b32 v4, 5, v0\ns_lshl_b32 s4, s2, 5\nv_add_u32 v3, s4, v3\nv_mul_u32_u24 v5, 3584, v4\nv_lshl_add_u32 v5, v3, 2, v5\nv_add_u32 v5, {WS_POUT}, v5")
e("v_mov_b32 v99, 0")
for i in range(35):
    e(f"global_load_dword v{64+i}, v5, s[40:41]\nv_add_u32 v5, {8*3584}, v5")
e("v_cmp_gt_u32 vcc, 4, v4\ns_and_saveexec_b64 s[12:13], vcc\nglobal_load_dword v99, v5, s[40:41]\ns_mov_b64 exec, s[12:13]")
e("v_lshlrev_b32 v6, 1, v3\nglobal_load_ushort v7, v6, s[16:17]")
e("v_mul_u32_u24 v8, 1171, v3\nv_lshrrev_b32 v8, 19, v8\nv_mul_u32_u24 v8, 448, v8\nv_sub_u32 v8, v3, v8\nv_lshlrev_b32 v8, 1, v8\nglobal_load_ushort v9, v8, s[36:37]")
e("s_waitcnt vmcnt(0)")
for i in range(35): e(f"v_add_f32 v99, v99, v{64+i}")
e("v_lshlrev_b32 v10, 2, v0\nds_write_b32 v10, v99")
e(BARL)
e("v_cmp_gt_u32 vcc, 32, v0\ns_and_saveexec_b64 s[12:13], vcc\ns_cbranch_execz kd_kernel_end")
for g in range(8): e(f"ds_read_b32 v{20+g}, v10 offset:{g*128}")
e("s_waitcnt lgkmcnt(0)")
for g in range(1,8): e(f"v_add_f32 v20, v20, v{20+g}")
e("v_lshlrev_b32 v7, 16, v7\nv_lshlrev_b32 v9, 16, v9\nv_add_f32 v20, v20, v7\nv_add_f32 v20, v20, v9\nv_cvt_pk_bf16_f32 v20, v20, v20\nglobal_store_short v6, v20, s[38:39]")
end("kd_kernel",104)
open(f"cdna_kernels/{NAME}.s","w").write("\n".join(O)+"\n")
```

```python
import sys
O=[]
def e(s): O.append(s)
NAME="parallel_sum__compressed_kv_cla__dense_activation_gelu__decode"
hdr=open(f"cdna_kernels/{NAME}.s.ref").read().split("; Override")[0]
e(hdr.rstrip())
e("; @launch kernel=ka_kernel grid=(270,1,1) block=(512,1,1) lds=49152")
e("; @launch kernel=kb_kernel grid=(284,1,1) block=(256,1,1) lds=74240")
e("; @launch kernel=kc_kernel grid=(256,1,1) block=(512,1,1) lds=40960")
e("; @launch kernel=kd_kernel grid=(28,1,1) block=(256,1,1) lds=1024")
e('.amdgcn_target "amdgcn-amd-amdhsa--gfx950"\n.text')
WS_QABS=0; WS_HID=0x10000; WS_M=0x20000; WS_L=0x24000; WS_PLAT=0x100000; WS_POUT=0x1000000
def start(n,limit):
    e(f".globl {n}\n.p2align 8\n.type {n},@function\n{n}:")
    e(f"s_cmp_ge_u32 s2, {limit}\ns_cbranch_scc1 {n}_end")
    e("s_load_dwordx16 s[16:31], s[0:1], 0")
    e("s_load_dwordx8 s[32:39], s[0:1], 64")
    e("s_load_dwordx2 s[40:41], s[0:1], 104")
    e("s_waitcnt lgkmcnt(0)")
def end(n,vg):
    e(f"{n}_end:\ns_endpgm")
    e(f""".section .rodata,"a"
.p2align 6
.amdhsa_kernel {n}
  .amdhsa_next_free_vgpr {vg}
  .amdhsa_next_free_sgpr 96
  .amdhsa_accum_offset {vg}
  .amdhsa_group_segment_fixed_size 0
  .amdhsa_kernarg_size 112
  .amdhsa_user_sgpr_count 2
  .amdhsa_user_sgpr_kernarg_segment_ptr 1
  .amdhsa_system_sgpr_workgroup_id_x 1
.end_amdhsa_kernel
.text""")
def bf(v,t): e(f"v_cvt_pk_bf16_f32 v{t}, v{v}, v{v}\nv_lshlrev_b32 v{v}, 16, v{t}")
def wred(op,v,lane,t,masks=(1,2,4,8,16,32)):
    for m in masks:
        e(f"v_xor_b32 v{t}, {m}, v{lane}\nv_lshlrev_b32 v{t}, 2, v{t}\nds_bpermute_b32 v{t}, v{t}, v{v}\ns_waitcnt lgkmcnt(0)\n{op} v{v}, v{v}, v{t}")
def fma_rows(buf,n,acc,xaddr,xstep,xt):
    for i in range(n):
        e(f"ds_read_b64 v[{xt}:{xt+1}], v{xaddr} offset:{i*xstep}")
        e(f"s_waitcnt vmcnt({n-1-i}) lgkmcnt(0)")
        for k in range(4):
            r=buf+4*i+k
            e(f"v_lshlrev_b32 v{xt+2}, 16, v{r}\nv_and_b32 v{xt+3}, 0xffff0000, v{r}")
            e(f"v_fmac_f32 v{acc+2*k}, v{xt+2}, v{xt}\nv_fmac_f32 v{acc+8+2*k}, v{xt+2}, v{xt+1}")
            e(f"v_fmac_f32 v{acc+2*k+1}, v{xt+3}, v{xt}\nv_fmac_f32 v{acc+8+2*k+1}, v{xt+3}, v{xt+1}")
def loads(buf,n,voff,step,base):
    for i in range(n):
        e(f"global_load_dwordx4 v[{buf+4*i}:{buf+4*i+3}], v{voff}, s[{base}:{base+1}]")
        if i<n-1: e(f"v_add_u32 v{voff}, {step}, v{voff}")
def zacc(a,n=16):
    for i in range(n): e(f"v_mov_b32 v{a+i}, 0")
def wacc(addr,acc,bstride):
    e(f"ds_write_b128 v{addr}, v[{acc}:{acc+3}]\nds_write_b128 v{addr}, v[{acc+4}:{acc+7}] offset:16")
    e(f"ds_write_b128 v{addr}, v[{acc+8}:{acc+11}] offset:{bstride}\nds_write_b128 v{addr}, v[{acc+12}:{acc+15}] offset:{bstride+16}")
BAR="s_waitcnt vmcnt(0) lgkmcnt(0)\ns_barrier"
BARL="s_waitcnt lgkmcnt(0)\ns_barrier"

start("ka_kernel",270)
e("v_mov_b32 v6, 0\nv_mov_b32 v7, 0")
e("v_and_b32 v1, 63, v0\nv_lshrrev_b32 v2, 6, v0\ns_nop 0\nv_readfirstlane_b32 s3, v2")
e("s_cmp_ge_u32 s2, 256\ns_cbranch_scc1 ka_ffn_ld")
e("s_and_b32 s4, s2, 7\ns_lshl_b32 s4, s4, 1\ns_bfe_u32 s5, s2, 0x10003\ns_add_u32 s4, s4, s5\ns_lshr_b32 s5, s2, 4")
e("v_and_b32 v3, 31, v0\nv_lshrrev_b32 v4, 5, v0\nv_lshlrev_b32 v5, 13, v4\nv_lshl_add_u32 v5, v3, 4, v5\ns_lshl_b32 s6, s4, 9\nv_add_u32 v5, s6, v5")
loads(64,14,5,131072,20)
e('v_add_u32 v5, 131072, v5')
e("s_and_b32 s7, s3, 3\ns_lshl_b32 s7, s7, 4\ns_lshl_b32 s8, s5, 6\ns_add_u32 s7, s7, s8")
e("v_and_b32 v6, 15, v1\nv_add_u32 v6, s7, v6\nv_lshlrev_b32 v6, 13, v6\nv_lshrrev_b32 v7, 4, v1\nv_lshl_add_u32 v6, v7, 4, v6\nv_add_u32 v6, s6, v6")
e("s_branch ka_ln")
e("ka_ffn_ld:\ns_sub_u32 s4, s2, 256")
e("v_and_b32 v3, 15, v0\nv_lshrrev_b32 v4, 4, v0\nv_mul_u32_u24 v5, 3584, v4\nv_lshl_add_u32 v5, v3, 4, v5\ns_lshl_b32 s6, s4, 8\nv_add_u32 v5, s6, v5")
loads(64,14,5,114688,30)
e("ka_ln:")
e("v_mov_b32 v8, 0\nv_mov_b32 v9, 0\nv_mov_b32 v10, 0\nv_mov_b32 v11, 0\nv_lshlrev_b32 v12, 4, v0\nds_write_b128 v12, v[8:11] offset:40960")
e("s_cmp_lg_u32 s3, 0\ns_cbranch_scc1 ka_lnd")
e("v_lshlrev_b32 v12, 1, v1")
for b in range(2):
    for i in range(7): e(f"global_load_ushort v{20+b*7+i}, v12, s[16:17] offset:{b*896+i*128}")
e("s_waitcnt vmcnt(0)")
for b in range(2):
    r=20+b*7
    for i in range(7): e(f"v_lshlrev_b32 v{r+i}, 16, v{r+i}")
    e(f"v_add_f32 v13, v{r}, v{r+1}")
    for i in range(2,7): e(f"v_add_f32 v13, v13, v{r+i}")
    wred("v_add_f32",13,1,14)
    e("v_mul_f32 v13, 0x3b124925, v13")
    e("v_mov_b32 v15, 0")
    for i in range(7): e(f"v_sub_f32 v14, v{r+i}, v13\nv_fmac_f32 v15, v14, v14")
    wred("v_add_f32",15,1,14)
    e("v_mul_f32 v15, 0x3b124925, v15")
    bf(13,14); bf(15,14)
    e("v_add_f32 v15, 0x3727c5ac, v15"); bf(15,14)
    e("v_sqrt_f32 v15, v15\ns_nop 0"); bf(15,14)
    e("v_rcp_f32 v15, v15\ns_nop 0")
    for i in range(7):
        e(f"v_sub_f32 v{r+i}, v{r+i}, v13"); bf(r+i,14)
        e(f"v_mul_f32 v{r+i}, v{r+i}, v15"); bf(r+i,14)
    e(f"v_lshlrev_b32 v14, 3, v1")
    for i in range(7): e(f"ds_write_b32 v14, v{r+i} offset:{i*512+b*4}")
e("ka_lnd:")
e(BARL)
zacc(40)
e("s_cmp_ge_u32 s2, 256\ns_cbranch_scc1 ka_ffn")
e("v_lshlrev_b32 v12, 3, v4")
fma_rows(64,14,40,12,128,16)
loads(64,14,5,131072,20)
e("v_add_u32 v12, 14*128, v12")
fma_rows(64,14,40,12,128,16)
for jj in range(8): e(f"global_load_dwordx4 v[{96+4*jj}:{99+4*jj}], v6, s[22:23] offset:{jj*64}")
e("v_lshlrev_b32 v12, 11, v4\nv_lshl_add_u32 v12, v3, 5, v12")
e("v_add_u32 v12, 4096, v12")
wacc(12,40,1024)
e(BARL)
e("v_lshlrev_b32 v12, 2, v0\nv_mov_b32 v13, 0")
for g in range(16): e(f"ds_read_b32 v{64+g}, v12 offset:{4096+g*2048}")
e("s_waitcnt lgkmcnt(0)")
for g in range(16): e(f"v_add_f32 v13, v13, v{64+g}")
e("v_cvt_pk_bf16_f32 v13, v13, v13\nv_lshlrev_b32 v12, 1, v0\nds_write_b16 v12, v13 offset:40960")
e(BARL)
e("s_cmp_ge_u32 s3, 4\ns_cbranch_scc1 ka_kernel_end")
e("v_and_b32 v12, 15, v1\nv_lshlrev_b32 v12, 9, v12\nv_lshl_add_u32 v12, v7, 4, v12")
for jj in range(8): e(f"ds_read_b128 v[{64+4*jj}:{67+4*jj}], v12 offset:{40960+jj*64}")
zacc(40,4)
e("s_waitcnt vmcnt(0) lgkmcnt(0)")
for jj in range(8): e(f"v_mfma_f32_16x16x32_bf16 v[40:43], v[{96+4*jj}:{99+4*jj}], v[{64+4*jj}:{67+4*jj}], v[40:43]")
e("s_nop 15")
e("v_cvt_pk_bf16_f32 v44, v40, v41\nv_cvt_pk_bf16_f32 v45, v42, v43")
e("v_and_b32 v12, 15, v1\nv_lshlrev_b32 v13, 15, v12\nv_lshl_add_u32 v13, v7, 3, v13\ns_lshl_b32 s9, s4, 11\ns_lshl_b32 s7, s7, 1\ns_add_u32 s9, s9, s7\nv_add_u32 v13, s9, v13")
e("v_cmp_gt_u32 vcc, 2, v12\ns_and_saveexec_b64 s[10:11], vcc\nglobal_store_dwordx2 v13, v[44:45], s[40:41]\ns_branch ka_kernel_end")
e("ka_ffn:")
e("v_lshlrev_b32 v12, 3, v4")
fma_rows(64,14,40,12,256,16)
e("v_lshlrev_b32 v12, 10, v4\nv_lshl_add_u32 v12, v3, 5, v12\nv_add_u32 v12, 4096, v12")
wacc(12,40,512)
e(BARL)
e("s_cmp_ge_u32 s3, 4\ns_cbranch_scc1 ka_kernel_end")
e("v_lshlrev_b32 v12, 2, v0\nv_mov_b32 v13, 0")
for g in range(32): e(f"ds_read_b32 v{64+g}, v12 offset:{4096+g*1024}")
e("v_and_b32 v14, 127, v0\ns_lshl_b32 s6, s4, 7\nv_add_u32 v14, s6, v14\nv_lshlrev_b32 v15, 1, v14\nglobal_load_ushort v16, v15, s[32:33]")
e("s_waitcnt lgkmcnt(0)")
for g in range(32): e(f"v_add_f32 v13, v13, v{64+g}")
bf(13,17)
e("s_waitcnt vmcnt(0)\nv_lshlrev_b32 v16, 16, v16\nv_add_f32 v13, v13, v16"); bf(13,17)
e("v_mul_f32 v16, v13, v13\nv_mul_f32 v16, 0x3d372713, v16\nv_add_f32 v16, 1.0, v16\nv_mul_f32 v16, v16, v13")
e("v_mul_f32 v16, 0xc0135761, v16")
e("v_exp_f32 v16, v16\ns_nop 0\nv_add_f32 v16, 1.0, v16\nv_rcp_f32 v16, v16\ns_nop 0\nv_mul_f32 v13, v13, v16"); bf(13,17)
e(f"v_lshrrev_b32 v15, 7, v0\nv_mul_u32_u24 v15, 1792, v15\nv_add_u32 v15, v15, v14\nv_lshlrev_b32 v15, 2, v15\nv_add_u32 v15, {WS_HID}, v15\nglobal_store_dword v15, v13, s[40:41]")
end("ka_kernel",128)

start("kb_kernel",284)
e("v_and_b32 v1, 63, v0\nv_lshrrev_b32 v2, 6, v0\ns_nop 0\nv_readfirstlane_b32 s3, v2")
e("s_cmp_ge_u32 s2, 256\ns_cbranch_scc1 kb_ffn")
e("s_lshr_b32 s4, s2, 7\ns_and_b32 s5, s2, 127")
e("v_and_b32 v3, 15, v1\nv_lshrrev_b32 v4, 4, v1")
e("s_lshl_b32 s6, s4, 23\ns_lshl_b32 s7, s5, 16\ns_add_u32 s6, s6, s7\ns_lshl_b32 s7, s3, 9\ns_add_u32 s6, s6, s7")
e("v_lshlrev_b32 v5, 11, v3\nv_lshl_add_u32 v5, v4, 4, v5\nv_add_u32 v5, s6, v5\nv_add_u32 v6, 0x8000, v5")
for j in range(8): e(f"global_load_dwordx4 v[{64+4*j}:{67+4*j}], v5, s[18:19] offset:{j*64}")
for j in range(8): e(f"global_load_dwordx4 v[{96+4*j}:{99+4*j}], v6, s[18:19] offset:{j*64}")
e("s_lshl_b32 s8, s4, 15\ns_add_u32 s8, s8, s7\nv_lshlrev_b32 v7, 11, v3\nv_lshl_add_u32 v7, v4, 4, v7\nv_add_u32 v7, s8, v7")
for j in range(8): e(f"global_load_dwordx4 v[{128+4*j}:{131+4*j}], v7, s[40:41] offset:{j*64}")
zacc(40,8)
e("v_mul_u32_u24 v8, 2064, v3\nv_lshl_add_u32 v8, v4, 4, v8\nv_add_u32 v8, s7, v8")
e("s_waitcnt vmcnt(8)")
for j in range(8): e(f"ds_write_b128 v8, v[{64+4*j}:{67+4*j}] offset:{j*64}\nds_write_b128 v8, v[{96+4*j}:{99+4*j}] offset:{j*64+16*2064}")
e("s_waitcnt vmcnt(0)")
for j in range(8):
    e(f"v_mfma_f32_16x16x32_bf16 v[40:43], v[{64+4*j}:{67+4*j}], v[{128+4*j}:{131+4*j}], v[40:43]")
    e(f"v_mfma_f32_16x16x32_bf16 v[44:47], v[{96+4*j}:{99+4*j}], v[{128+4*j}:{131+4*j}], v[44:47]")
e("s_nop 15")
e("v_lshlrev_b32 v9, 5, v1\nv_add_u32 v9, 66048, v9\ns_lshl_b32 s9, s3, 11\nv_add_u32 v15, s9, v9\nds_write_b128 v15, v[40:43]\nds_write_b128 v15, v[44:47] offset:16")
e(BARL)
for w in range(4): e(f"ds_read_b128 v[{160+8*w}:{163+8*w}], v9 offset:{w*2048}\nds_read_b128 v[{164+8*w}:{167+8*w}], v9 offset:{w*2048+16}")
e("s_waitcnt lgkmcnt(0)")
for i in range(8):
    e(f"v_add_f32 v{40+i}, v{160+i}, v{168+i}\nv_add_f32 v{40+i}, v{40+i}, v{176+i}\nv_add_f32 v{40+i}, v{40+i}, v{184+i}")
e("v_max_f32 v10, v40, v41")
for i in range(2,8): e(f"v_max_f32 v10, v10, v{40+i}")
wred("v_max_f32",10,1,11,(16,32))
e("v_mov_b32 v12, 0")
for i in range(8):
    e(f"v_sub_f32 v{40+i}, v{40+i}, v10\nv_mul_f32 v{40+i}, 0x3db8aa3b, v{40+i}\nv_exp_f32 v{40+i}, v{40+i}\ns_nop 0\nv_add_f32 v12, v12, v{40+i}")
wred("v_add_f32",12,1,11,(16,32))
for i in range(4): e(f"v_cvt_pk_bf16_f32 v{48+i}, v{40+2*i}, v{41+2*i}")
e("s_lshl_b32 s10, s2, 6\nv_lshl_add_u32 v13, v1, 2, s10\nv_add_u32 v14, %d, v13\nv_add_u32 v13, %d, v13"%(WS_M,WS_L))
e("s_cmp_lg_u32 s3, 0\ns_cbranch_scc1 kb_nost\nv_cmp_gt_u32 vcc, 16, v1\ns_and_saveexec_b64 s[12:13], vcc\nglobal_store_dword v14, v10, s[40:41]\nglobal_store_dword v13, v12, s[40:41]\ns_mov_b64 exec, s[12:13]\nkb_nost:")
e("v_lshrrev_b32 v13, 2, v3\nv_lshl_add_u32 v13, v4, 2, v13\nv_mul_u32_u24 v13, 2064, v13\nv_and_b32 v14, 3, v3\nv_lshl_add_u32 v13, v14, 3, v13\nv_add_u32 v13, s7, v13")
for n in range(16):
    e(f"ds_read_b64_tr_b16 v[{64+4*n}:{65+4*n}], v13 offset:{n*32}\nds_read_b64_tr_b16 v[{66+4*n}:{67+4*n}], v13 offset:{n*32+16*2064}")
e("s_waitcnt lgkmcnt(0)")
for n in range(16):
    e(f"v_mfma_f32_16x16x32_bf16 v[{128+4*n}:{131+4*n}], v[{64+4*n}:{67+4*n}], v[48:51], 0")
e("s_nop 15")
e(f"s_lshl_b32 s10, s2, 15\ns_add_u32 s10, s10, s7\ns_add_u32 s10, s10, {WS_PLAT}\nv_lshlrev_b32 v13, 11, v3\nv_lshl_add_u32 v13, v4, 3, v13\nv_add_u32 v13, s10, v13")
for n in range(16):
    r=128+4*n
    e(f"v_cvt_pk_bf16_f32 v{r}, v{r}, v{r+1}\nv_cvt_pk_bf16_f32 v{r+1}, v{r+2}, v{r+3}\nglobal_store_dwordx2 v13, v[{r}:{r+1}], s[40:41] offset:{n*32}")
e("s_branch kb_kernel_end")
e("kb_ffn:\ns_sub_u32 s4, s2, 256")
e("v_cmp_gt_u32 vcc, 224, v0\ns_and_saveexec_b64 s[12:13], vcc")
e("v_mul_u32_u24 v4, 1171, v0\nv_lshrrev_b32 v4, 16, v4\nv_mul_u32_u24 v3, 56, v4\nv_sub_u32 v3, v0, v3")
e("s_mul_i32 s6, s4, 64*896\nv_mul_u32_u24 v5, 896, v4\nv_lshl_add_u32 v5, v3, 4, v5\nv_add_u32 v5, s6, v5")
loads(64,16,5,4*896,34)
e(f"s_mov_b64 exec, s[12:13]\nv_cmp_gt_u32 vcc, 128, v0\ns_and_saveexec_b64 s[14:15], vcc\nv_and_b32 v6, 63, v0\ns_lshl_b32 s6, s4, 6\nv_add_u32 v6, s6, v6\nv_lshrrev_b32 v7, 6, v0\nv_mul_u32_u24 v8, 1792, v7\nv_add_u32 v8, v8, v6\nv_lshlrev_b32 v8, 2, v8\nv_add_u32 v8, {WS_HID}, v8\nglobal_load_dword v9, v8, s[40:41]")
e("v_and_b32 v6, 63, v0\nv_lshlrev_b32 v6, 3, v6\nv_lshl_add_u32 v6, v7, 2, v6\ns_waitcnt vmcnt(0)\nds_write_b32 v6, v9\ns_mov_b64 exec, s[14:15]")
e(BARL)
e("v_cmp_gt_u32 vcc, 224, v0\ns_and_saveexec_b64 s[12:13], vcc")
zacc(40)
e("v_lshlrev_b32 v12, 3, v4")
fma_rows(64,16,40,12,32,16)
e("v_mul_u32_u24 v12, 3584, v4\nv_lshl_add_u32 v12, v3, 5, v12\nv_add_u32 v12, 1024, v12")
wacc(12,40,1792)
e("s_mov_b64 exec, s[12:13]")
e(BARL)
e(f"s_mul_i32 s6, s2, 3584\ns_add_u32 s6, s6, {WS_POUT}")
for k in range(4):
    lim = 256 if k<3 else 128
    e(f"v_add_u32 v12, {k*256}, v0\nv_lshlrev_b32 v12, 2, v12")
    for g in range(4): e(f"ds_read_b32 v{20+g}, v12 offset:{1024+g*3584}")
    e("s_waitcnt lgkmcnt(0)\nv_add_f32 v20, v20, v21\nv_add_f32 v20, v20, v22\nv_add_f32 v20, v20, v23\nv_add_u32 v12, s6, v12")
    e(f"v_cmp_gt_u32 vcc, {lim}, v0\ns_and_saveexec_b64 s[12:13], vcc\nglobal_store_dword v12, v20, s[40:41]\ns_mov_b64 exec, s[12:13]")
end("kb_kernel",192)

start("kc_kernel",256)
e("v_and_b32 v1, 63, v0\nv_lshrrev_b32 v2, 6, v0\ns_nop 0\nv_readfirstlane_b32 s3, v2")
e("s_and_b32 s4, s2, 7\ns_lshl_b32 s4, s4, 1\ns_bfe_u32 s5, s2, 0x10003\ns_add_u32 s4, s4, s5\ns_lshr_b32 s5, s2, 4")
e(f"v_and_b32 v3, 7, v0\nv_lshrrev_b32 v4, 3, v0\nv_lshlrev_b32 v5, 15, v4\nv_lshl_add_u32 v5, v3, 4, v5\ns_lshl_b32 s6, s4, 11\ns_lshl_b32 s7, s5, 7\ns_add_u32 s6, s6, s7\ns_add_u32 s6, s6, {WS_PLAT}\nv_add_u32 v5, s6, v5")
loads(64,4,5,64*32768,40)
e("v_and_b32 v6, 31, v0\nv_lshrrev_b32 v7, 5, v0\ns_lshl_b32 s8, s5, 6\nv_add_u32 v8, s8, v7\nv_lshlrev_b32 v8, 13, v8\nv_lshl_add_u32 v8, v6, 4, v8\ns_lshl_b32 s9, s4, 9\nv_add_u32 v8, s9, v8")
loads(80,4,8,16*8192,24)
e("v_mul_u32_u24 v10, 1171, v0\nv_lshrrev_b32 v10, 16, v10\nv_mul_u32_u24 v9, 56, v10\nv_sub_u32 v9, v0, v9\nv_min_u32 v10, 7, v10")
e("s_lshl_b32 s9, s4, 8\nv_add_u32 v11, s9, v10\nv_mul_u32_u24 v11, 896, v11\nv_lshl_add_u32 v11, v9, 4, v11")
loads(128,32,11,8*896,26)
e("s_cmp_ge_u32 s3, 2\ns_cbranch_scc1 kc_st")
e(f"s_lshl_b32 s10, s3, 13\ns_lshl_b32 s11, s4, 2\ns_add_u32 s10, s10, s11\nv_lshl_add_u32 v12, v1, 6, s10\nv_add_u32 v13, {WS_M}, v12\nv_add_u32 v12, {WS_L}, v12")
e("global_load_dword v14, v13, s[40:41]\nglobal_load_dword v15, v13, s[40:41] offset:4096-4096+0".replace("4096-4096+0","0"))
O.pop(); e("global_load_dword v14, v13, s[40:41]\nglobal_load_dword v16, v12, s[40:41]\nv_add_u32 v13, 4096, v13\nv_add_u32 v12, 4096, v12\nglobal_load_dword v15, v13, s[40:41]\nglobal_load_dword v17, v12, s[40:41]")
e("s_waitcnt vmcnt(0)\nv_max_f32 v18, v14, v15")
wred("v_max_f32",18,1,19)
e("v_sub_f32 v14, v14, v18\nv_sub_f32 v15, v15, v18\nv_mul_f32 v14, 0x3db8aa3b, v14\nv_mul_f32 v15, 0x3db8aa3b, v15\nv_exp_f32 v14, v14\nv_exp_f32 v15, v15\ns_nop 0\nv_mul_f32 v18, v14, v16\nv_fmac_f32 v18, v15, v17")
wred("v_add_f32",18,1,19)
e("v_rcp_f32 v18, v18\ns_nop 0\nv_mul_f32 v14, v14, v18\nv_mul_f32 v15, v15, v18\ns_lshl_b32 s10, s3, 9\nv_lshl_add_u32 v19, v1, 2, s10\nds_write_b32 v19, v14\nds_write_b32 v19, v15 offset:256")
e("kc_st:")
e(BARL)
zacc(40)
e("v_lshlrev_b32 v12, 2, v4")
for i in range(4):
    e(f"ds_read_b32 v16, v12 offset:{i*256}\ns_waitcnt vmcnt({39-i}) lgkmcnt(0)")
    a=40+8*(i>>1)
    for k in range(4):
        r=64+4*i+k
        e(f"v_lshlrev_b32 v18, 16, v{r}\nv_and_b32 v19, 0xffff0000, v{r}\nv_fmac_f32 v{a+2*k}, v18, v16\nv_fmac_f32 v{a+2*k+1}, v19, v16")
e("v_lshlrev_b32 v12, 9, v4\nv_lshl_add_u32 v12, v3, 5, v12\nv_add_u32 v12, 4096, v12")
wacc(12,40,256)
e(BARL)
e("s_cmp_ge_u32 s3, 2\ns_cbranch_scc1 kc_l2\nv_lshlrev_b32 v12, 2, v0\nv_mov_b32 v13, 0")
for q in range(4):
    for g in range(16): e(f"ds_read_b32 v{20+g}, v12 offset:{4096+(q*16+g)*512}")
    e("s_waitcnt lgkmcnt(0)")
    for g in range(16): e(f"v_add_f32 v13, v13, v{20+g}")
e("v_and_b32 v12, 63, v0\nv_lshlrev_b32 v12, 3, v12\nv_lshl_add_u32 v12, v2, 2, v12\nds_write_b32 v12, v13 offset:1024\nkc_l2:")
e(BARL)
zacc(40)
e("v_lshlrev_b32 v12, 3, v7\nv_add_u32 v12, 1024, v12")
O_len=len(O); fma_rows(80,4,40,12,128,16)
for i in range(O_len,len(O)):
    if O[i].startswith("s_waitcnt vmcnt("): O[i]="s_waitcnt vmcnt(32) lgkmcnt(0)"
e("v_lshlrev_b32 v12, 11, v7\nv_lshl_add_u32 v12, v6, 5, v12\nv_add_u32 v12, 4096, v12")
wacc(12,40,1024)
e(BARL)
e("v_lshlrev_b32 v12, 2, v0\nv_mov_b32 v13, 0")
for g in range(16): e(f"ds_read_b32 v{20+g}, v12 offset:{4096+g*2048}")
e("s_waitcnt lgkmcnt(0)")
for g in range(16): e(f"v_add_f32 v13, v13, v{20+g}")
e("s_barrier\nv_and_b32 v12, 255, v0\nv_lshlrev_b32 v12, 3, v12\nv_lshrrev_b32 v14, 8, v0\nv_lshl_add_u32 v12, v14, 2, v12\nds_write_b32 v12, v13 offset:2048")
e(BARL)
zacc(40)
e("v_lshlrev_b32 v12, 3, v10\nv_add_u32 v12, 2048, v12")
fma_rows(128,32,40,12,64,16)
e("v_mul_u32_u24 v12, 3584, v10\nv_lshl_add_u32 v12, v9, 5, v12\nv_add_u32 v12, 4096, v12")
e("v_cmp_gt_u32 vcc, 448, v0\ns_and_saveexec_b64 s[12:13], vcc")
wacc(12,40,1792)
e("s_mov_b64 exec, s[12:13]")
e(BARL)
e(f"s_mul_i32 s6, s2, 3584\ns_add_u32 s6, s6, {WS_POUT}")
for k in range(2):
    lim=512 if k==0 else 384
    e(f"v_add_u32 v12, {k*512}, v0\nv_lshlrev_b32 v12, 2, v12\nv_mov_b32 v13, 0")
    for g in range(8): e(f"ds_read_b32 v{20+g}, v12 offset:{4096+g*3584}")
    e("s_waitcnt lgkmcnt(0)")
    for g in range(8): e(f"v_add_f32 v13, v13, v{20+g}")
    e(f"v_add_u32 v12, s6, v12\nv_cmp_gt_u32 vcc, {lim}, v0\ns_and_saveexec_b64 s[12:13], vcc\nglobal_store_dword v12, v13, s[40:41]\ns_mov_b64 exec, s[12:13]")
end("kc_kernel",256)

start("kd_kernel",28)
e(f"v_and_b32 v3, 31, v0\nv_lshrrev_b32 v4, 5, v0\ns_lshl_b32 s4, s2, 5\nv_add_u32 v3, s4, v3\nv_mul_u32_u24 v5, 3584, v4\nv_lshl_add_u32 v5, v3, 2, v5\nv_add_u32 v5, {WS_POUT}, v5")
e("v_mov_b32 v99, 0")
for i in range(35):
    e(f"global_load_dword v{64+i}, v5, s[40:41]\nv_add_u32 v5, {8*3584}, v5")
e("v_cmp_gt_u32 vcc, 4, v4\ns_and_saveexec_b64 s[12:13], vcc\nglobal_load_dword v99, v5, s[40:41]\ns_mov_b64 exec, s[12:13]")
e("v_lshlrev_b32 v6, 1, v3\nglobal_load_ushort v7, v6, s[16:17]")
e("v_mul_u32_u24 v8, 1171, v3\nv_lshrrev_b32 v8, 19, v8\nv_mul_u32_u24 v8, 448, v8\nv_sub_u32 v8, v3, v8\nv_lshlrev_b32 v8, 1, v8\nglobal_load_ushort v9, v8, s[36:37]")
e("s_waitcnt vmcnt(0)")
for i in range(35): e(f"v_add_f32 v99, v99, v{64+i}")
e("v_lshlrev_b32 v10, 2, v0\nds_write_b32 v10, v99")
e(BARL)
e("v_cmp_gt_u32 vcc, 32, v0\ns_and_saveexec_b64 s[12:13], vcc\ns_cbranch_execz kd_kernel_end")
for g in range(8): e(f"ds_read_b32 v{20+g}, v10 offset:{g*128}")
e("s_waitcnt lgkmcnt(0)")
for g in range(1,8): e(f"v_add_f32 v20, v20, v{20+g}")
e("v_lshlrev_b32 v7, 16, v7\nv_lshlrev_b32 v9, 16, v9\nv_add_f32 v20, v20, v7\nv_add_f32 v20, v20, v9\nv_cvt_pk_bf16_f32 v20, v20, v20\nglobal_store_short v6, v20, s[38:39]")
end("kd_kernel",104)
open(f"cdna_kernels/{NAME}.s","w").write("\n".join(O)+"\n")
```

```python
import sys
O=[]
def e(s): O.append(s)
NAME="parallel_sum__compressed_kv_cla__dense_activation_gelu__decode"
hdr=open(f"cdna_kernels/{NAME}.s.ref").read().split("; Override")[0]
e(hdr.rstrip())
e("; @launch kernel=ka_kernel grid=(270,1,1) block=(512,1,1) lds=49152")
e("; @launch kernel=kb_kernel grid=(284,1,1) block=(256,1,1) lds=74240")
e("; @launch kernel=kc_kernel grid=(256,1,1) block=(512,1,1) lds=40960")
e("; @launch kernel=kd_kernel grid=(28,1,1) block=(256,1,1) lds=1024")
e('.amdgcn_target "amdgcn-amd-amdhsa--gfx950"\n.text')
WS_QABS=0; WS_HID=0x10000; WS_M=0x20000; WS_L=0x24000; WS_PLAT=0x100000; WS_POUT=0x1000000
def start(n,limit):
    e(f".globl {n}\n.p2align 8\n.type {n},@function\n{n}:")
    e(f"s_cmp_ge_u32 s2, {limit}\ns_cbranch_scc1 {n}_end")
    e("s_load_dwordx16 s[16:31], s[0:1], 0")
    e("s_load_dwordx8 s[32:39], s[0:1], 64")
    e("s_load_dwordx2 s[40:41], s[0:1], 104")
    e("s_waitcnt lgkmcnt(0)")
def end(n,vg):
    e(f"{n}_end:\ns_endpgm")
    e(f""".section .rodata,"a"
.p2align 6
.amdhsa_kernel {n}
  .amdhsa_next_free_vgpr {vg}
  .amdhsa_next_free_sgpr 96
  .amdhsa_accum_offset {vg}
  .amdhsa_group_segment_fixed_size 0
  .amdhsa_kernarg_size 112
  .amdhsa_user_sgpr_count 2
  .amdhsa_user_sgpr_kernarg_segment_ptr 1
  .amdhsa_system_sgpr_workgroup_id_x 1
.end_amdhsa_kernel
.text""")
def bf(v,t): e(f"v_cvt_pk_bf16_f32 v{t}, v{v}, v{v}\nv_lshlrev_b32 v{v}, 16, v{t}")
def wred(op,v,lane,t,masks=(1,2,4,8,16,32)):
    for m in masks:
        e(f"v_xor_b32 v{t}, {m}, v{lane}\nv_lshlrev_b32 v{t}, 2, v{t}\nds_bpermute_b32 v{t}, v{t}, v{v}\ns_waitcnt lgkmcnt(0)\n{op} v{v}, v{v}, v{t}")
def fma_rows(buf,n,acc,xaddr,xstep,xt):
    for i in range(n):
        e(f"ds_read_b64 v[{xt}:{xt+1}], v{xaddr} offset:{i*xstep}")
        e(f"s_waitcnt vmcnt({n-1-i}) lgkmcnt(0)")
        for k in range(4):
            r=buf+4*i+k
            e(f"v_lshlrev_b32 v{xt+2}, 16, v{r}\nv_and_b32 v{xt+3}, 0xffff0000, v{r}")
            e(f"v_fmac_f32 v{acc+2*k}, v{xt+2}, v{xt}\nv_fmac_f32 v{acc+8+2*k}, v{xt+2}, v{xt+1}")
            e(f"v_fmac_f32 v{acc+2*k+1}, v{xt+3}, v{xt}\nv_fmac_f32 v{acc+8+2*k+1}, v{xt+3}, v{xt+1}")
def loads(buf,n,voff,step,base):
    for i in range(n):
        e(f"global_load_dwordx4 v[{buf+4*i}:{buf+4*i+3}], v{voff}, s[{base}:{base+1}]")
        if i<n-1: e(f"v_add_u32 v{voff}, {step}, v{voff}")
def zacc(a,n=16):
    for i in range(n): e(f"v_mov_b32 v{a+i}, 0")
def wacc(addr,acc,bstride):
    e(f"ds_write_b128 v{addr}, v[{acc}:{acc+3}]\nds_write_b128 v{addr}, v[{acc+4}:{acc+7}] offset:16")
    e(f"ds_write_b128 v{addr}, v[{acc+8}:{acc+11}] offset:{bstride}\nds_write_b128 v{addr}, v[{acc+12}:{acc+15}] offset:{bstride+16}")
BAR="s_waitcnt vmcnt(0) lgkmcnt(0)\ns_barrier"
BARL="s_waitcnt lgkmcnt(0)\ns_barrier"

start("ka_kernel",270)
e("v_mov_b32 v6, 0\nv_mov_b32 v7, 0")
e("v_and_b32 v1, 63, v0\nv_lshrrev_b32 v2, 6, v0\ns_nop 0\nv_readfirstlane_b32 s3, v2")
e("s_cmp_ge_u32 s2, 256\ns_cbranch_scc1 ka_ffn_ld")
e("s_and_b32 s4, s2, 7\ns_lshl_b32 s4, s4, 1\ns_bfe_u32 s5, s2, 0x10003\ns_add_u32 s4, s4, s5\ns_lshr_b32 s5, s2, 4")
e("v_and_b32 v3, 31, v0\nv_lshrrev_b32 v4, 5, v0\nv_lshlrev_b32 v5, 13, v4\nv_lshl_add_u32 v5, v3, 4, v5\ns_lshl_b32 s6, s4, 9\nv_add_u32 v5, s6, v5")
e("s_and_b32 s7, s3, 3\ns_lshl_b32 s7, s7, 4\ns_lshl_b32 s8, s5, 6\ns_add_u32 s7, s7, s8")
e("v_and_b32 v6, 15, v1\nv_add_u32 v6, s7, v6\nv_lshlrev_b32 v6, 13, v6\nv_lshrrev_b32 v7, 4, v1\nv_lshl_add_u32 v6, v7, 4, v6\nv_add_u32 v6, s6, v6")
for jj in range(8): e(f"global_load_dwordx4 v[{96+4*jj}:{99+4*jj}], v6, s[22:23] offset:{jj*64}")
loads(64,8,5,131072,20)
e('v_add_u32 v5, 131072, v5')
e("s_branch ka_ln")
e("ka_ffn_ld:\ns_sub_u32 s4, s2, 256")
e("v_and_b32 v3, 15, v0\nv_lshrrev_b32 v4, 4, v0\nv_mul_u32_u24 v5, 3584, v4\nv_lshl_add_u32 v5, v3, 4, v5\ns_lshl_b32 s6, s4, 8\nv_add_u32 v5, s6, v5")
loads(64,14,5,114688,30)
e("ka_ln:")
e("v_mov_b32 v8, 0\nv_mov_b32 v9, 0\nv_mov_b32 v10, 0\nv_mov_b32 v11, 0\nv_lshlrev_b32 v12, 4, v0\nds_write_b128 v12, v[8:11] offset:40960")
e("s_cmp_lg_u32 s3, 0\ns_cbranch_scc1 ka_lnd")
e("v_lshlrev_b32 v12, 1, v1")
for b in range(2):
    for i in range(7): e(f"global_load_ushort v{20+b*7+i}, v12, s[16:17] offset:{b*896+i*128}")
e("s_waitcnt vmcnt(0)")
for b in range(2):
    r=20+b*7
    for i in range(7): e(f"v_lshlrev_b32 v{r+i}, 16, v{r+i}")
    e(f"v_add_f32 v13, v{r}, v{r+1}")
    for i in range(2,7): e(f"v_add_f32 v13, v13, v{r+i}")
    wred("v_add_f32",13,1,14)
    e("v_mul_f32 v13, 0x3b124925, v13")
    e("v_mov_b32 v15, 0")
    for i in range(7): e(f"v_sub_f32 v14, v{r+i}, v13\nv_fmac_f32 v15, v14, v14")
    wred("v_add_f32",15,1,14)
    e("v_mul_f32 v15, 0x3b124925, v15")
    bf(13,14); bf(15,14)
    e("v_add_f32 v15, 0x3727c5ac, v15"); bf(15,14)
    e("v_sqrt_f32 v15, v15\ns_nop 0"); bf(15,14)
    e("v_rcp_f32 v15, v15\ns_nop 0")
    for i in range(7):
        e(f"v_sub_f32 v{r+i}, v{r+i}, v13"); bf(r+i,14)
        e(f"v_mul_f32 v{r+i}, v{r+i}, v15"); bf(r+i,14)
    e(f"v_lshlrev_b32 v14, 3, v1")
    for i in range(7): e(f"ds_write_b32 v14, v{r+i} offset:{i*512+b*4}")
e("ka_lnd:")
e(BARL)
zacc(40)
e("s_cmp_ge_u32 s2, 256\ns_cbranch_scc1 ka_ffn")
e("v_lshlrev_b32 v12, 3, v4")
for i in range(28):
    buf=64+4*(i%8)
    e(f"ds_read_b64 v[16:17], v12 offset:{i*128}")
    e(f"s_waitcnt vmcnt({min(7,27-i)}) lgkmcnt(0)")
    for k in range(4):
        r=buf+k
        e(f"v_lshlrev_b32 v18, 16, v{r}\nv_and_b32 v19, 0xffff0000, v{r}")
        e(f"v_fmac_f32 v{40+2*k}, v18, v16\nv_fmac_f32 v{48+2*k}, v18, v17")
        e(f"v_fmac_f32 v{41+2*k}, v19, v16\nv_fmac_f32 v{49+2*k}, v19, v17")
    if i+8<28:
        e(f"global_load_dwordx4 v[{buf}:{buf+3}], v5, s[20:21]\nv_add_u32 v5, 131072, v5")
e("v_lshlrev_b32 v12, 11, v4\nv_lshl_add_u32 v12, v3, 5, v12")
e("v_add_u32 v12, 4096, v12")
wacc(12,40,1024)
e(BARL)
e("v_lshlrev_b32 v12, 2, v0\nv_mov_b32 v13, 0")
for g in range(16): e(f"ds_read_b32 v{64+g}, v12 offset:{4096+g*2048}")
e("s_waitcnt lgkmcnt(0)")
for g in range(16): e(f"v_add_f32 v13, v13, v{64+g}")
e("v_cvt_pk_bf16_f32 v13, v13, v13\nv_lshlrev_b32 v12, 1, v0\nds_write_b16 v12, v13 offset:40960")
e(BARL)
e("s_cmp_ge_u32 s3, 4\ns_cbranch_scc1 ka_kernel_end")
e("v_and_b32 v12, 15, v1\nv_lshlrev_b32 v12, 9, v12\nv_lshl_add_u32 v12, v7, 4, v12")
for jj in range(8): e(f"ds_read_b128 v[{64+4*jj}:{67+4*jj}], v12 offset:{40960+jj*64}")
zacc(40,4)
e("s_waitcnt vmcnt(0) lgkmcnt(0)")
for jj in range(8): e(f"v_mfma_f32_16x16x32_bf16 v[40:43], v[{96+4*jj}:{99+4*jj}], v[{64+4*jj}:{67+4*jj}], v[40:43]")
e("s_nop 15")
e("v_cvt_pk_bf16_f32 v44, v40, v41\nv_cvt_pk_bf16_f32 v45, v42, v43")
e("v_and_b32 v12, 15, v1\nv_lshlrev_b32 v13, 15, v12\nv_lshl_add_u32 v13, v7, 3, v13\ns_lshl_b32 s9, s4, 11\ns_lshl_b32 s7, s7, 1\ns_add_u32 s9, s9, s7\nv_add_u32 v13, s9, v13")
e("v_cmp_gt_u32 vcc, 2, v12\ns_and_saveexec_b64 s[10:11], vcc\nglobal_store_dwordx2 v13, v[44:45], s[40:41]\ns_branch ka_kernel_end")
e("ka_ffn:")
e("v_lshlrev_b32 v12, 3, v4")
fma_rows(64,14,40,12,256,16)
e("v_lshlrev_b32 v12, 10, v4\nv_lshl_add_u32 v12, v3, 5, v12\nv_add_u32 v12, 4096, v12")
wacc(12,40,512)
e(BARL)
e("s_cmp_ge_u32 s3, 4\ns_cbranch_scc1 ka_kernel_end")
e("v_lshlrev_b32 v12, 2, v0\nv_mov_b32 v13, 0")
for g in range(32): e(f"ds_read_b32 v{64+g}, v12 offset:{4096+g*1024}")
e("v_and_b32 v14, 127, v0\ns_lshl_b32 s6, s4, 7\nv_add_u32 v14, s6, v14\nv_lshlrev_b32 v15, 1, v14\nglobal_load_ushort v16, v15, s[32:33]")
e("s_waitcnt lgkmcnt(0)")
for g in range(32): e(f"v_add_f32 v13, v13, v{64+g}")
bf(13,17)
e("s_waitcnt vmcnt(0)\nv_lshlrev_b32 v16, 16, v16\nv_add_f32 v13, v13, v16"); bf(13,17)
e("v_mul_f32 v16, v13, v13\nv_mul_f32 v16, 0x3d372713, v16\nv_add_f32 v16, 1.0, v16\nv_mul_f32 v16, v16, v13")
e("v_mul_f32 v16, 0xc0135761, v16")
e("v_exp_f32 v16, v16\ns_nop 0\nv_add_f32 v16, 1.0, v16\nv_rcp_f32 v16, v16\ns_nop 0\nv_mul_f32 v13, v13, v16"); bf(13,17)
e(f"v_lshrrev_b32 v15, 7, v0\nv_mul_u32_u24 v15, 1792, v15\nv_add_u32 v15, v15, v14\nv_lshlrev_b32 v15, 2, v15\nv_add_u32 v15, {WS_HID}, v15\nglobal_store_dword v15, v13, s[40:41]")
end("ka_kernel",128)

start("kb_kernel",284)
e("v_and_b32 v1, 63, v0\nv_lshrrev_b32 v2, 6, v0\ns_nop 0\nv_readfirstlane_b32 s3, v2")
e("s_cmp_ge_u32 s2, 256\ns_cbranch_scc1 kb_ffn")
e("s_lshr_b32 s4, s2, 7\ns_and_b32 s5, s2, 127")
e("v_and_b32 v3, 15, v1\nv_lshrrev_b32 v4, 4, v1")
e("s_lshl_b32 s6, s4, 23\ns_lshl_b32 s7, s5, 16\ns_add_u32 s6, s6, s7\ns_lshl_b32 s7, s3, 9\ns_add_u32 s6, s6, s7")
e("v_lshlrev_b32 v5, 11, v3\nv_lshl_add_u32 v5, v4, 4, v5\nv_add_u32 v5, s6, v5\nv_add_u32 v6, 0x8000, v5")
for j in range(8): e(f"global_load_dwordx4 v[{64+4*j}:{67+4*j}], v5, s[18:19] offset:{j*64}")
for j in range(8): e(f"global_load_dwordx4 v[{96+4*j}:{99+4*j}], v6, s[18:19] offset:{j*64}")
e("s_lshl_b32 s8, s4, 15\ns_add_u32 s8, s8, s7\nv_lshlrev_b32 v7, 11, v3\nv_lshl_add_u32 v7, v4, 4, v7\nv_add_u32 v7, s8, v7")
for j in range(8): e(f"global_load_dwordx4 v[{128+4*j}:{131+4*j}], v7, s[40:41] offset:{j*64}")
zacc(40,8)
e("v_mul_u32_u24 v8, 2064, v3\nv_lshl_add_u32 v8, v4, 4, v8\nv_add_u32 v8, s7, v8")
e("s_waitcnt vmcnt(8)")
for j in range(8): e(f"ds_write_b128 v8, v[{64+4*j}:{67+4*j}] offset:{j*64}\nds_write_b128 v8, v[{96+4*j}:{99+4*j}] offset:{j*64+16*2064}")
e("s_waitcnt vmcnt(0)")
for j in range(8):
    e(f"v_mfma_f32_16x16x32_bf16 v[40:43], v[{64+4*j}:{67+4*j}], v[{128+4*j}:{131+4*j}], v[40:43]")
    e(f"v_mfma_f32_16x16x32_bf16 v[44:47], v[{96+4*j}:{99+4*j}], v[{128+4*j}:{131+4*j}], v[44:47]")
e("s_nop 15")
e("v_lshlrev_b32 v9, 5, v1\nv_add_u32 v9, 66048, v9\ns_lshl_b32 s9, s3, 11\nv_add_u32 v15, s9, v9\nds_write_b128 v15, v[40:43]\nds_write_b128 v15, v[44:47] offset:16")
e(BARL)
for w in range(4): e(f"ds_read_b128 v[{160+8*w}:{163+8*w}], v9 offset:{w*2048}\nds_read_b128 v[{164+8*w}:{167+8*w}], v9 offset:{w*2048+16}")
e("s_waitcnt lgkmcnt(0)")
for i in range(8):
    e(f"v_add_f32 v{40+i}, v{160+i}, v{168+i}\nv_add_f32 v{40+i}, v{40+i}, v{176+i}\nv_add_f32 v{40+i}, v{40+i}, v{184+i}")
e("v_max_f32 v10, v40, v41")
for i in range(2,8): e(f"v_max_f32 v10, v10, v{40+i}")
wred("v_max_f32",10,1,11,(16,32))
e("v_mov_b32 v12, 0")
for i in range(8):
    e(f"v_sub_f32 v{40+i}, v{40+i}, v10\nv_mul_f32 v{40+i}, 0x3db8aa3b, v{40+i}\nv_exp_f32 v{40+i}, v{40+i}\ns_nop 0\nv_add_f32 v12, v12, v{40+i}")
wred("v_add_f32",12,1,11,(16,32))
for i in range(4): e(f"v_cvt_pk_bf16_f32 v{48+i}, v{40+2*i}, v{41+2*i}")
e("s_lshl_b32 s10, s2, 6\nv_lshl_add_u32 v13, v1, 2, s10\nv_add_u32 v14, %d, v13\nv_add_u32 v13, %d, v13"%(WS_M,WS_L))
e("s_cmp_lg_u32 s3, 0\ns_cbranch_scc1 kb_nost\nv_cmp_gt_u32 vcc, 16, v1\ns_and_saveexec_b64 s[12:13], vcc\nglobal_store_dword v14, v10, s[40:41]\nglobal_store_dword v13, v12, s[40:41]\ns_mov_b64 exec, s[12:13]\nkb_nost:")
e("v_lshrrev_b32 v13, 2, v3\nv_lshl_add_u32 v13, v4, 2, v13\nv_mul_u32_u24 v13, 2064, v13\nv_and_b32 v14, 3, v3\nv_lshl_add_u32 v13, v14, 3, v13\nv_add_u32 v13, s7, v13")
for n in range(16):
    e(f"ds_read_b64_tr_b16 v[{64+4*n}:{65+4*n}], v13 offset:{n*32}\nds_read_b64_tr_b16 v[{66+4*n}:{67+4*n}], v13 offset:{n*32+16*2064}")
e("s_waitcnt lgkmcnt(0)")
for n in range(16):
    e(f"v_mfma_f32_16x16x32_bf16 v[{128+4*n}:{131+4*n}], v[{64+4*n}:{67+4*n}], v[48:51], 0")
e("s_nop 15")
e(f"s_lshl_b32 s10, s2, 15\ns_add_u32 s10, s10, s7\ns_add_u32 s10, s10, {WS_PLAT}\nv_lshlrev_b32 v13, 11, v3\nv_lshl_add_u32 v13, v4, 3, v13\nv_add_u32 v13, s10, v13")
for n in range(16):
    r=128+4*n
    e(f"v_cvt_pk_bf16_f32 v{r}, v{r}, v{r+1}\nv_cvt_pk_bf16_f32 v{r+1}, v{r+2}, v{r+3}\nglobal_store_dwordx2 v13, v[{r}:{r+1}], s[40:41] offset:{n*32}")
e("s_branch kb_kernel_end")
e("kb_ffn:\ns_sub_u32 s4, s2, 256")
e("v_cmp_gt_u32 vcc, 224, v0\ns_and_saveexec_b64 s[12:13], vcc")
e("v_mul_u32_u24 v4, 1171, v0\nv_lshrrev_b32 v4, 16, v4\nv_mul_u32_u24 v3, 56, v4\nv_sub_u32 v3, v0, v3")
e("s_mul_i32 s6, s4, 64*896\nv_mul_u32_u24 v5, 896, v4\nv_lshl_add_u32 v5, v3, 4, v5\nv_add_u32 v5, s6, v5")
loads(64,16,5,4*896,34)
e(f"s_mov_b64 exec, s[12:13]\nv_cmp_gt_u32 vcc, 128, v0\ns_and_saveexec_b64 s[14:15], vcc\nv_and_b32 v6, 63, v0\ns_lshl_b32 s6, s4, 6\nv_add_u32 v6, s6, v6\nv_lshrrev_b32 v7, 6, v0\nv_mul_u32_u24 v8, 1792, v7\nv_add_u32 v8, v8, v6\nv_lshlrev_b32 v8, 2, v8\nv_add_u32 v8, {WS_HID}, v8\nglobal_load_dword v9, v8, s[40:41]")
e("v_and_b32 v6, 63, v0\nv_lshlrev_b32 v6, 3, v6\nv_lshl_add_u32 v6, v7, 2, v6\ns_waitcnt vmcnt(0)\nds_write_b32 v6, v9\ns_mov_b64 exec, s[14:15]")
e(BARL)
e("v_cmp_gt_u32 vcc, 224, v0\ns_and_saveexec_b64 s[12:13], vcc")
zacc(40)
e("v_lshlrev_b32 v12, 3, v4")
fma_rows(64,16,40,12,32,16)
e("v_mul_u32_u24 v12, 3584, v4\nv_lshl_add_u32 v12, v3, 5, v12\nv_add_u32 v12, 1024, v12")
wacc(12,40,1792)
e("s_mov_b64 exec, s[12:13]")
e(BARL)
e(f"s_mul_i32 s6, s2, 3584\ns_add_u32 s6, s6, {WS_POUT}")
for k in range(4):
    lim = 256 if k<3 else 128
    e(f"v_add_u32 v12, {k*256}, v0\nv_lshlrev_b32 v12, 2, v12")
    for g in range(4): e(f"ds_read_b32 v{20+g}, v12 offset:{1024+g*3584}")
    e("s_waitcnt lgkmcnt(0)\nv_add_f32 v20, v20, v21\nv_add_f32 v20, v20, v22\nv_add_f32 v20, v20, v23\nv_add_u32 v12, s6, v12")
    e(f"v_cmp_gt_u32 vcc, {lim}, v0\ns_and_saveexec_b64 s[12:13], vcc\nglobal_store_dword v12, v20, s[40:41]\ns_mov_b64 exec, s[12:13]")
end("kb_kernel",192)

start("kc_kernel",256)
e("v_and_b32 v1, 63, v0\nv_lshrrev_b32 v2, 6, v0\ns_nop 0\nv_readfirstlane_b32 s3, v2")
e("s_and_b32 s4, s2, 7\ns_lshl_b32 s4, s4, 1\ns_bfe_u32 s5, s2, 0x10003\ns_add_u32 s4, s4, s5\ns_lshr_b32 s5, s2, 4")
e(f"v_and_b32 v3, 7, v0\nv_lshrrev_b32 v4, 3, v0\nv_lshlrev_b32 v5, 15, v4\nv_lshl_add_u32 v5, v3, 4, v5\ns_lshl_b32 s6, s4, 11\ns_lshl_b32 s7, s5, 7\ns_add_u32 s6, s6, s7\ns_add_u32 s6, s6, {WS_PLAT}\nv_add_u32 v5, s6, v5")
loads(64,4,5,64*32768,40)
e("v_and_b32 v6, 31, v0\nv_lshrrev_b32 v7, 5, v0\ns_lshl_b32 s8, s5, 6\nv_add_u32 v8, s8, v7\nv_lshlrev_b32 v8, 13, v8\nv_lshl_add_u32 v8, v6, 4, v8\ns_lshl_b32 s9, s4, 9\nv_add_u32 v8, s9, v8")
loads(80,4,8,16*8192,24)
e("v_mul_u32_u24 v10, 1171, v0\nv_lshrrev_b32 v10, 16, v10\nv_mul_u32_u24 v9, 56, v10\nv_sub_u32 v9, v0, v9\nv_min_u32 v10, 7, v10")
e("s_lshl_b32 s9, s4, 8\nv_add_u32 v11, s9, v10\nv_mul_u32_u24 v11, 896, v11\nv_lshl_add_u32 v11, v9, 4, v11")
loads(128,32,11,8*896,26)
e("s_cmp_ge_u32 s3, 2\ns_cbranch_scc1 kc_st")
e(f"s_lshl_b32 s10, s3, 13\ns_lshl_b32 s11, s4, 2\ns_add_u32 s10, s10, s11\nv_lshl_add_u32 v12, v1, 6, s10\nv_add_u32 v13, {WS_M}, v12\nv_add_u32 v12, {WS_L}, v12")
e("global_load_dword v14, v13, s[40:41]\nglobal_load_dword v15, v13, s[40:41] offset:4096-4096+0".replace("4096-4096+0","0"))
O.pop(); e("global_load_dword v14, v13, s[40:41]\nglobal_load_dword v16, v12, s[40:41]\nv_add_u32 v13, 4096, v13\nv_add_u32 v12, 4096, v12\nglobal_load_dword v15, v13, s[40:41]\nglobal_load_dword v17, v12, s[40:41]")
e("s_waitcnt vmcnt(0)\nv_max_f32 v18, v14, v15")
wred("v_max_f32",18,1,19)
e("v_sub_f32 v14, v14, v18\nv_sub_f32 v15, v15, v18\nv_mul_f32 v14, 0x3db8aa3b, v14\nv_mul_f32 v15, 0x3db8aa3b, v15\nv_exp_f32 v14, v14\nv_exp_f32 v15, v15\ns_nop 0\nv_mul_f32 v18, v14, v16\nv_fmac_f32 v18, v15, v17")
wred("v_add_f32",18,1,19)
e("v_rcp_f32 v18, v18\ns_nop 0\nv_mul_f32 v14, v14, v18\nv_mul_f32 v15, v15, v18\ns_lshl_b32 s10, s3, 9\nv_lshl_add_u32 v19, v1, 2, s10\nds_write_b32 v19, v14\nds_write_b32 v19, v15 offset:256")
e("kc_st:")
e(BARL)
zacc(40)
e("v_lshlrev_b32 v12, 2, v4")
for i in range(4):
    e(f"ds_read_b32 v16, v12 offset:{i*256}\ns_waitcnt vmcnt({39-i}) lgkmcnt(0)")
    a=40+8*(i>>1)
    for k in range(4):
        r=64+4*i+k
        e(f"v_lshlrev_b32 v18, 16, v{r}\nv_and_b32 v19, 0xffff0000, v{r}\nv_fmac_f32 v{a+2*k}, v18, v16\nv_fmac_f32 v{a+2*k+1}, v19, v16")
e("v_lshlrev_b32 v12, 9, v4\nv_lshl_add_u32 v12, v3, 5, v12\nv_add_u32 v12, 4096, v12")
wacc(12,40,256)
e(BARL)
e("s_cmp_ge_u32 s3, 2\ns_cbranch_scc1 kc_l2\nv_lshlrev_b32 v12, 2, v0\nv_mov_b32 v13, 0")
for q in range(4):
    for g in range(16): e(f"ds_read_b32 v{20+g}, v12 offset:{4096+(q*16+g)*512}")
    e("s_waitcnt lgkmcnt(0)")
    for g in range(16): e(f"v_add_f32 v13, v13, v{20+g}")
e("v_and_b32 v12, 63, v0\nv_lshlrev_b32 v12, 3, v12\nv_lshl_add_u32 v12, v2, 2, v12\nds_write_b32 v12, v13 offset:1024\nkc_l2:")
e(BARL)
zacc(40)
e("v_lshlrev_b32 v12, 3, v7\nv_add_u32 v12, 1024, v12")
O_len=len(O); fma_rows(80,4,40,12,128,16)
for i in range(O_len,len(O)):
    if O[i].startswith("s_waitcnt vmcnt("): O[i]="s_waitcnt vmcnt(32) lgkmcnt(0)"
e("v_lshlrev_b32 v12, 11, v7\nv_lshl_add_u32 v12, v6, 5, v12\nv_add_u32 v12, 4096, v12")
wacc(12,40,1024)
e(BARL)
e("v_lshlrev_b32 v12, 2, v0\nv_mov_b32 v13, 0")
for g in range(16): e(f"ds_read_b32 v{20+g}, v12 offset:{4096+g*2048}")
e("s_waitcnt lgkmcnt(0)")
for g in range(16): e(f"v_add_f32 v13, v13, v{20+g}")
e("s_barrier\nv_and_b32 v12, 255, v0\nv_lshlrev_b32 v12, 3, v12\nv_lshrrev_b32 v14, 8, v0\nv_lshl_add_u32 v12, v14, 2, v12\nds_write_b32 v12, v13 offset:2048")
e(BARL)
zacc(40)
e("v_lshlrev_b32 v12, 3, v10\nv_add_u32 v12, 2048, v12")
fma_rows(128,32,40,12,64,16)
e("v_mul_u32_u24 v12, 3584, v10\nv_lshl_add_u32 v12, v9, 5, v12\nv_add_u32 v12, 4096, v12")
e("v_cmp_gt_u32 vcc, 448, v0\ns_and_saveexec_b64 s[12:13], vcc")
wacc(12,40,1792)
e("s_mov_b64 exec, s[12:13]")
e(BARL)
e(f"s_mul_i32 s6, s2, 3584\ns_add_u32 s6, s6, {WS_POUT}")
for k in range(2):
    lim=512 if k==0 else 384
    e(f"v_add_u32 v12, {k*512}, v0\nv_lshlrev_b32 v12, 2, v12\nv_mov_b32 v13, 0")
    for g in range(8): e(f"ds_read_b32 v{20+g}, v12 offset:{4096+g*3584}")
    e("s_waitcnt lgkmcnt(0)")
    for g in range(8): e(f"v_add_f32 v13, v13, v{20+g}")
    e(f"v_add_u32 v12, s6, v12\nv_cmp_gt_u32 vcc, {lim}, v0\ns_and_saveexec_b64 s[12:13], vcc\nglobal_store_dword v12, v13, s[40:41]\ns_mov_b64 exec, s[12:13]")
end("kc_kernel",256)

start("kd_kernel",28)
e(f"v_and_b32 v3, 31, v0\nv_lshrrev_b32 v4, 5, v0\ns_lshl_b32 s4, s2, 5\nv_add_u32 v3, s4, v3\nv_mul_u32_u24 v5, 3584, v4\nv_lshl_add_u32 v5, v3, 2, v5\nv_add_u32 v5, {WS_POUT}, v5")
e("v_mov_b32 v99, 0")
for i in range(35):
    e(f"global_load_dword v{64+i}, v5, s[40:41]\nv_add_u32 v5, {8*3584}, v5")
e("v_cmp_gt_u32 vcc, 4, v4\ns_and_saveexec_b64 s[12:13], vcc\nglobal_load_dword v99, v5, s[40:41]\ns_mov_b64 exec, s[12:13]")
e("v_lshlrev_b32 v6, 1, v3\nglobal_load_ushort v7, v6, s[16:17]")
e("v_mul_u32_u24 v8, 1171, v3\nv_lshrrev_b32 v8, 19, v8\nv_mul_u32_u24 v8, 448, v8\nv_sub_u32 v8, v3, v8\nv_lshlrev_b32 v8, 1, v8\nglobal_load_ushort v9, v8, s[36:37]")
e("s_waitcnt vmcnt(0)")
for i in range(35): e(f"v_add_f32 v99, v99, v{64+i}")
e("v_lshlrev_b32 v10, 2, v0\nds_write_b32 v10, v99")
e(BARL)
e("v_cmp_gt_u32 vcc, 32, v0\ns_and_saveexec_b64 s[12:13], vcc\ns_cbranch_execz kd_kernel_end")
for g in range(8): e(f"ds_read_b32 v{20+g}, v10 offset:{g*128}")
e("s_waitcnt lgkmcnt(0)")
for g in range(1,8): e(f"v_add_f32 v20, v20, v{20+g}")
e("v_lshlrev_b32 v7, 16, v7\nv_lshlrev_b32 v9, 16, v9\nv_add_f32 v20, v20, v7\nv_add_f32 v20, v20, v9\nv_cvt_pk_bf16_f32 v20, v20, v20\nglobal_store_short v6, v20, s[38:39]")
end("kd_kernel",104)
open(f"cdna_kernels/{NAME}.s","w").write("\n".join(O)+"\n")
```
